```python
import torch

def _softmax(x, axis=-1):
    return torch.softmax(x, dim=axis)
def _gelu(x):
    return torch.nn.functional.gelu(x, approximate="tanh")
def _silu(x):
    return torch.nn.functional.silu(x)
def _sigmoid(x):
    return torch.sigmoid(x)
def _layernorm(x, axis=-1, eps=1e-5):
    m = x.mean(dim=axis, keepdim=True)
    v = x.var(dim=axis, keepdim=True, unbiased=False)
    return (x - m) / torch.sqrt(v + eps)
def _scatter_add(tgt, idx, src, axis=0):
    return tgt.clone().index_add_(axis, idx, src)
def _segment_sum(src, seg, n):
    out = torch.zeros((n,) + src.shape[1:], dtype=src.dtype)
    return out.index_add_(0, seg, src)
def _pad(x, pw):
    flat = tuple(v for pair in reversed(pw) for v in pair)
    return torch.nn.functional.pad(x, flat)

kernel_name = 'recurrent_scan__mha_block_cached__glu_gated_reglu__decode'

def setup_inputs():

    _w = (lambda a: (lambda t: t.to(torch.bfloat16) if t.is_floating_point() else t)(torch.as_tensor(a)))
    def _A_setup():
        B, Sq, D = 4, 1, 512
        H, Sk, Dh = 32, 4096, 128
        return {
            "x": _w((lambda *s: torch.randn(*s, dtype=torch.bfloat16) * 0.05)(B, Sq, D)),
            "k_cache": _w((lambda *s: torch.randn(*s, dtype=torch.bfloat16) * 3.2)(B, H, Sk, Dh)),
            "v_cache": _w((lambda *s: torch.randn(*s, dtype=torch.bfloat16) * 3.2)(B, H, Sk, Dh)),
            "wq": _w((lambda *s: torch.randn(*s, dtype=torch.bfloat16) * 3.2)(D, H * Dh) * (D ** -0.5)),
            "wo": _w((lambda *s: torch.randn(*s, dtype=torch.bfloat16) * 3.2)(H * Dh, D) * ((H * Dh) ** -0.5)),
        }
    _A_in = _A_setup()

    def _B_setup():
        B, S, D, F = 4, 1, 512, 1792
        return {
            "x": _w((lambda *s: torch.randn(*s, dtype=torch.bfloat16) * 0.05)(B, S, D)),
            "W_gate": _w((lambda *s: torch.randn(*s, dtype=torch.bfloat16) * 0.4)(D, F) * (2.0 / D) ** 0.5),
            "W_up": _w((lambda *s: torch.randn(*s, dtype=torch.bfloat16) * 0.4)(D, F) * (2.0 / D) ** 0.5),
            "W_down": _w((lambda *s: torch.randn(*s, dtype=torch.bfloat16) * 0.4)(F, D) * (1.0 / F) ** 0.5),
        }
    _B_in = _B_setup()

    return {
        "A_x": _A_in["x"],
        "A_k_cache": _A_in["k_cache"],
        "A_v_cache": _A_in["v_cache"],
        "A_wq": _A_in["wq"],
        "A_wo": _A_in["wo"],
        "B_x": _B_in["x"],
        "B_W_gate": _B_in["W_gate"],
        "B_W_up": _B_in["W_up"],
        "B_W_down": _B_in["W_down"],
    }

def reference(A_x, A_k_cache, A_v_cache, A_wq, A_wo, B_x, B_W_gate, B_W_up, B_W_down):
    def _A_ref(x, k_cache, v_cache, wq, wo):
        B, Sq, D = x.shape
        H, Dh = 32, 128
        q = (lambda x, *d: x.permute(*d))((x @ wq).reshape(B, Sq, H, Dh), 0, 2, 1, 3)
        scores = torch.einsum("bhqd,bhkd->bhqk", q, k_cache) * (Dh ** -0.5)
        p = _softmax(scores, axis=-1)
        o = torch.einsum("bhqk,bhkd->bhqd", p, v_cache)
        return (lambda x, *d: x.permute(*d))(o, 0, 2, 1, 3).reshape(B, Sq, H * Dh) @ wo

    def _B_ref(x, W_gate, W_up, W_down):
        gate = torch.einsum("bsd,df->bsf", x, W_gate)
        up = torch.einsum("bsd,df->bsf", x, W_up)
        gate = gate * (lambda x, dt: x.to(dt))(gate > 0, gate.dtype)
        h = gate * up
        return torch.einsum("bsf,fd->bsd", h, W_down)

    x = A_x
    xn = _layernorm(x, axis=-1)
    s = _A_ref(xn, A_k_cache, A_v_cache, A_wq, A_wo)
    g = _silu(_B_ref(xn, B_W_gate, B_W_up, B_W_down))
    return x + s * g
```

```python
import sys, re
KN = "recurrent_scan__mha_block_cached__glu_gated_reglu__decode_kernel"
s = open(sys.argv[1]).read()
k = int(sys.argv[3]); mode = sys.argv[4]; A = int(sys.argv[5]); X = int(sys.argv[6]) if len(sys.argv) > 6 else -1
m = re.search(r"; @launch (grid=\S+ block=\S+ lds=\d+)\n", s)
if m:
    lines = f"; @launch kernel={KN} {m.group(1)}\n; @launch kernel=amp_kernel grid=(1,1,1) block=(256,1,1) lds=64\n"
    s = s.replace(m.group(0), lines)
else:
    s = s.replace('.amdgcn_target', '; @launch kernel=amp_kernel grid=(1,1,1) block=(256,1,1) lds=64\n.amdgcn_target', 1)
op = {"max": "ds_max_u32", "min": "ds_min_u32", "avg": "ds_add_u32"}[mode]
init = {"max": 0, "min": -1, "avg": 0}[mode]
code = f""".p2align 8
.globl amp_kernel
.type amp_kernel,@function
amp_kernel:
    s_cmp_ge_u32 s2, 1
    s_cbranch_scc1 LA_end
    s_load_dwordx2 s[4:5], s[0:1], 88
    v_lshlrev_b32 v1, 6, v0
    v_mov_b32 v2, 0
    v_mov_b32 v3, -1
    v_mov_b32 v4, {init}
    ds_write_b32 v2, v3
    ds_write_b32 v2, v4 offset:4
    s_waitcnt lgkmcnt(0)
    s_mov_b32 s6, 0x20000000
    s_mov_b32 s7, 0x20000
    s_mov_b32 s8, 0x10000000
    buffer_load_dword v5, v1, s[4:7], s8 offen
    {"v_and_b32 v1, 0xfffffe3f, v1" if X >= 0 else "s_nop 0"}
    {f"v_or_b32 v1, {X << 6}, v1" if X >= 0 else "s_nop 0"}
    buffer_load_dword v6, v1, s[4:7], s8 offen offset:{8*k}
    s_barrier
    s_waitcnt vmcnt(0)
    ds_min_u32 v2, v5
    s_waitcnt lgkmcnt(0)
    s_barrier
    ds_read_b32 v7, v2
    s_waitcnt lgkmcnt(0)
    v_sub_u32 v6, v6, v7
    {op} v2, v6 offset:4
    s_waitcnt lgkmcnt(0)
    s_barrier
    ds_read_b32 v7, v2 offset:4
    s_waitcnt lgkmcnt(0)
    v_readfirstlane_b32 s9, v7
    s_memrealtime s[10:11]
    s_mul_i32 s9, s9, {A}
    {"s_lshr_b32 s9, s9, 8" if mode == "avg" else "s_nop 0"}
    s_min_u32 s9, s9, 200000
    s_waitcnt lgkmcnt(0)
LA_spin:
    s_memrealtime s[12:13]
    s_waitcnt lgkmcnt(0)
    s_sub_u32 s12, s12, s10
    s_cmp_lt_u32 s12, s9
    s_cbranch_scc1 LA_spin
LA_end:
    s_endpgm
"""
s = s.replace('.section .rodata,"a"', code + '.section .rodata,"a"', 1)
s += """.p2align 6
.amdhsa_kernel amp_kernel
  .amdhsa_next_free_vgpr 8
  .amdhsa_next_free_sgpr 16
  .amdhsa_accum_offset 8
  .amdhsa_group_segment_fixed_size 0
  .amdhsa_kernarg_size 96
  .amdhsa_user_sgpr_count 2
  .amdhsa_user_sgpr_kernarg_segment_ptr 1
  .amdhsa_system_sgpr_workgroup_id_x 1
.end_amdhsa_kernel
"""
open(sys.argv[2], "w").write(s)
```

```python
import sys, re
KN = "recurrent_scan__mha_block_cached__glu_gated_reglu__decode_kernel"
s = open(sys.argv[1]).read()
k = int(sys.argv[3]); mode = sys.argv[4]; A = int(sys.argv[5]); X = int(sys.argv[6]) if len(sys.argv) > 6 else -1
m = re.search(r"; @launch (grid=\S+ block=\S+ lds=\d+)\n", s)
if m:
    lines = f"; @launch kernel={KN} {m.group(1)}\n; @launch kernel=amp_kernel grid=(1,1,1) block=(256,1,1) lds=64\n"
    s = s.replace(m.group(0), lines)
else:
    s = s.replace('.amdgcn_target', '; @launch kernel=amp_kernel grid=(1,1,1) block=(256,1,1) lds=64\n.amdgcn_target', 1)
rel = mode == "rel"
if rel: mode = "avg"
op = {"max": "ds_max_u32", "min": "ds_min_u32", "avg": "ds_add_u32"}[mode]
init = {"max": 0, "min": -1, "avg": 0}[mode]
code = f""".p2align 8
.globl amp_kernel
.type amp_kernel,@function
amp_kernel:
    s_cmp_ge_u32 s2, 1
    s_cbranch_scc1 LA_end
    s_load_dwordx2 s[4:5], s[0:1], 88
    v_lshlrev_b32 v1, 6, v0
    v_mov_b32 v2, 0
    v_mov_b32 v3, -1
    v_mov_b32 v4, {init}
    ds_write_b32 v2, v3
    ds_write_b32 v2, v4 offset:4
    s_waitcnt lgkmcnt(0)
    s_mov_b32 s6, 0x20000000
    s_mov_b32 s7, 0x20000
    s_mov_b32 s8, 0x10000000
    buffer_load_dword v5, v1, s[4:7], s8 offen offset:{8*k if rel else 0}
    {"v_and_b32 v1, 0xfffffe3f, v1" if X >= 0 else "s_nop 0"}
    {f"v_or_b32 v1, {X << 6}, v1" if X >= 0 else "s_nop 0"}
    buffer_load_dword v6, v1, s[4:7], s8 offen offset:{8*k}
    s_barrier
    s_waitcnt vmcnt(0)
    ds_min_u32 v2, v5
    s_waitcnt lgkmcnt(0)
    s_barrier
    ds_read_b32 v7, v2
    s_waitcnt lgkmcnt(0)
    {"v_subrev_u32 v7, 300, v5" if rel else "s_nop 0"}
    v_sub_u32 v6, v6, v7
    {op} v2, v6 offset:4
    s_waitcnt lgkmcnt(0)
    s_barrier
    ds_read_b32 v7, v2 offset:4
    s_waitcnt lgkmcnt(0)
    v_readfirstlane_b32 s9, v7
    s_memrealtime s[10:11]
    s_mul_i32 s9, s9, {A}
    {"s_lshr_b32 s9, s9, 8" if mode == "avg" else "s_nop 0"}
    s_min_u32 s9, s9, 200000
    s_waitcnt lgkmcnt(0)
LA_spin:
    s_memrealtime s[12:13]
    s_waitcnt lgkmcnt(0)
    s_sub_u32 s12, s12, s10
    s_cmp_lt_u32 s12, s9
    s_cbranch_scc1 LA_spin
LA_end:
    s_endpgm
"""
s = s.replace('.section .rodata,"a"', code + '.section .rodata,"a"', 1)
s += """.p2align 6
.amdhsa_kernel amp_kernel
  .amdhsa_next_free_vgpr 8
  .amdhsa_next_free_sgpr 16
  .amdhsa_accum_offset 8
  .amdhsa_group_segment_fixed_size 0
  .amdhsa_kernarg_size 96
  .amdhsa_user_sgpr_count 2
  .amdhsa_user_sgpr_kernarg_segment_ptr 1
  .amdhsa_system_sgpr_workgroup_id_x 1
.end_amdhsa_kernel
"""
open(sys.argv[2], "w").write(s)
```
